```python
import torch

def _softmax(x, axis=-1):
    return torch.softmax(x, dim=axis)
def _gelu(x):
    return torch.nn.functional.gelu(x, approximate="tanh")
def _silu(x):
    return torch.nn.functional.silu(x)
def _sigmoid(x):
    return torch.sigmoid(x)
def _layernorm(x, axis=-1, eps=1e-5):
    m = x.mean(dim=axis, keepdim=True)
    v = x.var(dim=axis, keepdim=True, unbiased=False)
    return (x - m) / torch.sqrt(v + eps)
def _scatter_add(tgt, idx, src, axis=0):
    return tgt.clone().index_add_(axis, idx, src)
def _segment_sum(src, seg, n):
    out = torch.zeros((n,) + src.shape[1:], dtype=src.dtype)
    return out.index_add_(0, seg, src)
def _pad(x, pw):
    flat = tuple(v for pair in reversed(pw) for v in pair)
    return torch.nn.functional.pad(x, flat)

kernel_name = 'interleave_layers__sliding_block__glu_gated_bilinear__prompt'

def setup_inputs():

    _w = (lambda a: (lambda t: t.to(torch.bfloat16) if t.is_floating_point() else t)(torch.as_tensor(a)))
    def _A_setup():
        B, S, D = 1, 2048, 448
        return {
            "x": _w((lambda *s: torch.randn(*s, dtype=torch.bfloat16) * 0.05)(B, S, D)),
            "wqkv": _w((lambda *s: torch.randn(*s, dtype=torch.bfloat16) * 0.05)(D, 3 * D)),
            "wo": _w((lambda *s: torch.randn(*s, dtype=torch.bfloat16) * 0.05)(D, D)),
        }
    _A_in = _A_setup()

    def _B_setup():
        B, S, D, F = 1, 2048, 448, 1792
        return {
            "x": _w((lambda *s: torch.randn(*s, dtype=torch.bfloat16) * 0.05)(B, S, D)),
            "w_gate": _w((lambda *s: torch.randn(*s, dtype=torch.bfloat16) * 0.8)(D, F) * (D ** -0.5)),
            "w_up": _w((lambda *s: torch.randn(*s, dtype=torch.bfloat16) * 0.8)(D, F) * (D ** -0.5)),
            "w_down": _w((lambda *s: torch.randn(*s, dtype=torch.bfloat16) * 0.8)(F, D) * (F ** -0.5)),
        }
    _B_in = _B_setup()

    return {
        "A_x": _A_in["x"],
        "A_wqkv": _A_in["wqkv"],
        "A_wo": _A_in["wo"],
        "B_x": _B_in["x"],
        "B_w_gate": _B_in["w_gate"],
        "B_w_up": _B_in["w_up"],
        "B_w_down": _B_in["w_down"],
    }

def reference(A_x, A_wqkv, A_wo, B_x, B_w_gate, B_w_up, B_w_down):
    def _A_ref(x, wqkv, wo):
        B, S, D = x.shape
        H = 16; Dh = D // H; W = 256
        qkv = (lambda x, *d: x.permute(*d))((x @ wqkv).reshape(B, S, 3, H, Dh), 2, 0, 3, 1, 4)
        q, k, v = qkv[0], qkv[1], qkv[2]
        scores = torch.einsum("bhqd,bhkd->bhqk", q, k) * (Dh ** -0.5)
        idx = torch.arange(S)
        mask = (idx[:, None] - idx[None, :] >= 0) & (idx[:, None] - idx[None, :] < W)
        scores = torch.where(mask[None, None], scores, -1e9)
        p = _softmax(scores, axis=-1)
        o = torch.einsum("bhqk,bhkd->bhqd", p, v)
        return (lambda x, *d: x.permute(*d))(o, 0, 2, 1, 3).reshape(B, S, D) @ wo

    def _B_ref(x, w_gate, w_up, w_down):
        g = torch.einsum("bsd,df->bsf", x, w_gate)
        u = torch.einsum("bsd,df->bsf", x, w_up)
        h = g * u
        return torch.einsum("bsf,fd->bsd", h, w_down)

    x = A_x
    x = x + _A_ref(_layernorm(x, axis=-1), A_wqkv, A_wo)
    x = x + _B_ref(_layernorm(x, axis=-1), B_w_gate, B_w_up, B_w_down)
    x = x + _A_ref(_layernorm(x, axis=-1), A_wqkv, A_wo)
    x = x + _B_ref(_layernorm(x, axis=-1), B_w_gate, B_w_up, B_w_down)
    return x
```

```python
import struct, sys, math

OUT = sys.argv[1] if len(sys.argv) > 1 else "interleave_layers__sliding_block__glu_gated_bilinear__prompt.s"

WQKV_F = 0x000000
WO_F   = 0x200000
WGU_F  = 0x300000
WD_F   = 0x700000
CS_QKV = 0x900000
CS_GU  = 0x904000
Q_F    = 0xA00000
K_F    = 0xC00000
V_F    = 0xE00000
O_F    = 0x1000000
X1     = 0x1200000
X2     = 0x1400000
H_F    = 0x1600000
XBYTES = 2048 * 448 * 2

KA_X, KA_WQKV, KA_WO, KA_BX, KA_WG, KA_WU, KA_WD, KA_OUT, KA_DBG, KA_WS = [8 * i for i in range(10)]


def f32bits(x):
    return struct.unpack("<I", struct.pack("<f", x))[0]


class K:
    def __init__(self, name):
        self.name = name
        self.lines = []
        self.nlab = 0
        self.vm = 0

    def e(self, s):
        self.lines.append("    " + s)

    def c(self, s):
        self.lines.append("    ; " + s)

    def label(self, l):
        self.lines.append(l + ":")

    def newlab(self, p="L"):
        self.nlab += 1
        return f"{self.name}_{p}{self.nlab}"

    def vmem(self, s):
        self.e(s)
        self.vm += 1

    def waitvm(self, mark):
        n = self.vm - mark
        assert 0 <= n <= 63, n
        self.e(f"s_waitcnt vmcnt({n})")

    def srd(self, d, blo, off, size):
        if off:
            self.e(f"s_add_u32 s{d}, s{blo}, 0x{off:x}")
            self.e(f"s_addc_u32 s{d+1}, s{blo+1}, 0")
        else:
            self.e(f"s_mov_b32 s{d}, s{blo}")
            self.e(f"s_mov_b32 s{d+1}, s{blo+1}")
        self.e(f"s_mov_b32 s{d+2}, 0x{size:x}")
        self.e(f"s_mov_b32 s{d+3}, 0x20000")

    def allreduce(self, op, x, t):
        self.e(f"v_mov_b32 v{t}, v{x}")
        self.e("s_nop 1")
        self.e(f"v_permlane16_swap_b32 v{t}, v{x}")
        self.e(f"{op} v{x}, v{t}, v{x}")
        self.e(f"v_mov_b32 v{t}, v{x}")
        self.e("s_nop 1")
        self.e(f"v_permlane32_swap_b32 v{t}, v{x}")
        self.e(f"{op} v{x}, v{t}, v{x}")

    def rbf16(self, x):
        self.e(f"v_cvt_pk_bf16_f32 v{x}, v{x}, v{x}")
        self.e(f"v_lshlrev_b32 v{x}, 16, v{x}")


kernels = []


def vr(b, n=4):
    return f"v[{b}:{b+n-1}]"


def ar(b, n=4):
    return f"a[{b}:{b+n-1}]"


def gen_prep():
    k = K("prep_kernel")
    NT = 460
    k.e("s_load_dwordx4 s[4:7], s[0:1], 8")
    k.e("s_load_dwordx4 s[12:15], s[0:1], 32")
    k.e("s_load_dwordx2 s[16:17], s[0:1], 48")
    k.e("s_load_dwordx2 s[18:19], s[0:1], 72")
    k.e("v_lshrrev_b32 v1, 6, v0")
    k.e("v_and_b32 v0, 63, v0")
    k.e("s_nop 0")
    k.e("v_readfirstlane_b32 s3, v1")
    k.e("s_lshl_b32 s20, s2, 2")
    k.e("s_add_u32 s20, s20, s3")
    k.e(f"s_cmp_ge_u32 s20, {NT}")
    k.e("s_cbranch_scc1 prep_done")
    k.e("v_lshrrev_b32 v2, 4, v0")
    k.e("v_and_b32 v3, 15, v0")
    k.e("v_lshlrev_b32 v4, 4, v0")
    k.e("v_mov_b32 v9, 0x3f803f80")
    k.e("v_mov_b32 v8, 0")
    k.e("s_waitcnt lgkmcnt(0)")
    k.srd(24, 18, 0, 0x1000000)
    k.e("s_cmp_lt_u32 s20, 96")
    k.e("s_cbranch_scc1 prep_qkv")
    k.e("s_cmp_lt_u32 s20, 320")
    k.e("s_cbranch_scc1 prep_gu")
    k.e("s_cmp_lt_u32 s20, 348")
    k.e("s_cbranch_scc1 prep_wo")
    k.e("s_branch prep_wd")

    def body(stride, nsteps, perm, groups, colsum_off=None, wo_pad=False):
        for e_ in range(8):
            ro = (16 * (e_ >> 2) + (e_ & 3)) if perm else e_
            k.e(f"s_mov_b32 s{32+e_}, {ro*stride}")
        c0 = 0
        for gsz in groups:
            m0 = k.vm
            for c in range(c0, c0 + gsz):
                base = 16 + 8 * (c - c0)
                for e_ in range(8):
                    va = 6 if (wo_pad and e_ >= 4) else 5
                    k.vmem(f"buffer_load_ushort v{base + e_}, v{va}, s[28:31], s{32+e_} offen")
                if c != nsteps - 1:
                    k.e(f"v_add_u32 v5, {32*stride if not wo_pad else 28*stride}, v5")
                    if wo_pad:
                        k.e(f"v_add_u32 v6, {28*stride}, v6")
            k.e("s_waitcnt vmcnt(0)")
            for c in range(c0, c0 + gsz):
                base = 16 + 8 * (c - c0)
                for j in range(4):
                    k.e(f"v_lshl_or_b32 v{base+j}, v{base+2*j+1}, 16, v{base+2*j}")
                if colsum_off is not None:
                    for j in range(4):
                        k.e(f"v_dot2_f32_bf16 v8, v{base+j}, v9, v8")
                k.e(f"s_add_u32 s23, s21, {c*1024}")
                k.vmem(f"buffer_store_dwordx4 {vr(base)}, v4, s[24:27], s23 offen")
            k.e("s_waitcnt vmcnt(0)")
            c0 += gsz
        if colsum_off is not None:
            k.e("s_nop 3")
            k.allreduce("v_add_f32", 8, 10)
            k.e("v_lshlrev_b32 v10, 2, v3")
            k.e(f"s_add_u32 s22, s22, 0x{colsum_off:x}")
            k.vmem("buffer_store_dword v8, v10, s[24:27], s22 offen")
        k.e("s_endpgm")

    k.label("prep_qkv")
    k.srd(28, 4, 0, 448 * 1344 * 2)
    k.e("s_mul_i32 s40, s20, 43691")
    k.e("s_lshr_b32 s40, s40, 19")
    k.e("s_mul_i32 s41, s40, 12")
    k.e("s_sub_u32 s41, s20, s41")
    k.e("s_cmp_lt_u32 s41, 8")
    k.e("s_cbranch_scc0 prep_qkv_v")
    k.e("s_lshl_b32 s42, s40, 3")
    k.e("s_add_u32 s42, s42, s41")
    k.e("s_lshr_b32 s43, s42, 5")
    k.e("s_and_b32 s44, s42, 31")
    k.e("s_lshr_b32 s44, s44, 1")
    k.e("s_and_b32 s45, s42, 1")
    k.e("s_branch prep_qkv_c")
    k.label("prep_qkv_v")
    k.e("s_sub_u32 s42, s41, 8")
    k.e("s_mov_b32 s43, 2")
    k.e("s_lshr_b32 s44, s42, 1")
    k.e("s_lshl_b32 s46, s40, 1")
    k.e("s_add_u32 s44, s44, s46")
    k.e("s_and_b32 s45, s42, 1")
    k.label("prep_qkv_c")
    k.e("s_mul_i32 s46, s43, 448")
    k.e("s_mul_i32 s47, s44, 28")
    k.e("s_add_u32 s46, s46, s47")
    k.e("s_lshl_b32 s47, s45, 4")
    k.e("s_add_u32 s46, s46, s47")
    k.e("v_add_u32 v10, s47, v3")
    k.e("v_add_u32 v5, s46, v3")
    k.e("v_lshlrev_b32 v5, 1, v5")
    k.e(f"v_mul_u32_u24 v11, {8*2688}, v2")
    k.e("v_add_u32 v5, v5, v11")
    k.e("v_cmp_gt_u32 vcc, 28, v10")
    k.e("v_mov_b32 v11, 0x40000000")
    k.e("s_nop 1")
    k.e("v_cndmask_b32 v5, v11, v5, vcc")
    k.e("s_mul_i32 s21, s20, 14336")
    k.e(f"s_add_u32 s21, s21, 0x{WQKV_F:x}")
    k.e("s_lshl_b32 s22, s20, 6")
    body(2688, 14, False, [7, 7], colsum_off=CS_QKV)

    k.label("prep_gu")
    k.e("s_sub_u32 s40, s20, 96")
    k.e("s_and_b32 s41, s40, 2")
    k.e("s_cmp_eq_u32 s41, 0")
    k.e("s_cselect_b32 s42, s12, s14")
    k.e("s_cselect_b32 s43, s13, s15")
    k.srd(28, 42, 0, 448 * 1792 * 2)
    k.e("s_lshr_b32 s44, s40, 2")
    k.e("s_lshl_b32 s44, s44, 5")
    k.e("s_and_b32 s45, s40, 1")
    k.e("s_lshl_b32 s45, s45, 4")
    k.e("s_add_u32 s44, s44, s45")
    k.e("v_add_u32 v5, s44, v3")
    k.e("v_lshlrev_b32 v5, 1, v5")
    k.e(f"v_mul_u32_u24 v11, {8*3584}, v2")
    k.e("v_add_u32 v5, v5, v11")
    k.e("s_mul_i32 s21, s40, 14336")
    k.e(f"s_add_u32 s21, s21, 0x{WGU_F:x}")
    k.e("s_lshl_b32 s22, s40, 6")
    body(3584, 14, False, [7, 7], colsum_off=CS_GU)

    k.label("prep_wo")
    k.srd(28, 6, 0, 448 * 448 * 2)
    k.e("s_sub_u32 s40, s20, 320")
    k.e("s_lshl_b32 s44, s40, 4")
    k.e("v_add_u32 v5, s44, v3")
    k.e("v_lshlrev_b32 v5, 1, v5")
    k.e(f"v_mul_u32_u24 v11, {4*896}, v2")
    k.e("v_add_u32 v5, v5, v11")
    k.e("v_cmp_gt_u32 vcc, 3, v2")
    k.e("v_mov_b32 v11, 0x40000000")
    k.e("s_nop 1")
    k.e("v_cndmask_b32 v6, v11, v5, vcc")
    k.e("s_lshl_b32 s21, s40, 14")
    k.e(f"s_add_u32 s21, s21, 0x{WO_F:x}")
    body(896, 16, True, [6, 5, 5], wo_pad=True)

    k.label("prep_wd")
    k.srd(28, 16, 0, 1792 * 448 * 2)
    k.e("s_sub_u32 s40, s20, 348")
    k.e("s_lshr_b32 s41, s40, 2")
    k.e("s_and_b32 s42, s40, 3")
    k.e("s_lshl_b32 s44, s41, 4")
    k.e("v_add_u32 v5, s44, v3")
    k.e("v_lshlrev_b32 v5, 1, v5")
    k.e(f"v_mul_u32_u24 v11, {4*896}, v2")
    k.e("v_add_u32 v5, v5, v11")
    k.e(f"s_mul_i32 s45, s42, {14*32*896}")
    k.e("v_add_u32 v5, s45, v5")
    k.e("s_mul_i32 s21, s40, 14336")
    k.e(f"s_add_u32 s21, s21, 0x{WD_F:x}")
    body(896, 14, True, [7, 7])
    k.label("prep_done")
    k.e("s_endpgm")
    kernels.append((k, 80, 0, 64))
    return ("prep_kernel", 115, 256, 0)


def gen_lngemm(name, kind, xsrc):
    k = K(name)
    qkv = kind == "qkv"
    MT = 4 if qkv else 8
    NTW = 3 if qkv else 4
    NB = 8 if qkv else 14
    NWG = 256 if qkv else 224
    DPW = MT // 4
    STATS = MT * 14 * 1024
    LDS = STATS + MT * 16 * 8
    AF = 16
    SF = AF + 2 * MT * 4
    ST = SF + 2 * DPW * 4
    CS = ST + 2 * DPW
    CS += CS & 1
    CS = (CS + 3) & ~3
    if qkv:
        MR = CS + NTW * 4
        MRV = MR + MT * 2
        TMP = MRV + MT * 8
        TMP = (TMP + 3) & ~3
        ACC = TMP + 16
    else:
        MR = AF
        MRV = 0
        TMP = AF + MT * 2
        ACC = CS + NTW * 4
    NV = ACC + MT * NTW * 4
    assert NV <= 256, NV
    NA = 14 * NTW * 4

    k.e(f"s_cmp_ge_u32 s2, {NWG}")
    k.e(f"s_cbranch_scc1 {name}_done")
    k.e("s_load_dwordx2 s[4:5], s[0:1], 72")
    if xsrc[0] == "arg":
        k.e(f"s_load_dwordx2 s[6:7], s[0:1], {xsrc[1]}")
    k.e("v_lshrrev_b32 v1, 6, v0")
    k.e("v_and_b32 v0, 63, v0")
    k.e("s_nop 0")
    k.e("v_readfirstlane_b32 s3, v1")
    k.e("v_lshrrev_b32 v2, 4, v0")
    k.e("v_and_b32 v3, 15, v0")
    k.e("v_lshlrev_b32 v5, 4, v0")
    k.e("v_mul_u32_u24 v4, 896, v3")
    k.e("v_lshl_add_u32 v4, v2, 4, v4")
    k.e("v_add_u32 v6, 0xe000, v5")
    if qkv:
        k.e("s_lshr_b32 s20, s2, 3")
        k.e("s_and_b32 s21, s2, 7")
    else:
        k.e("s_mul_i32 s20, s2, 4682")
        k.e("s_lshr_b32 s20, s20, 16")
        k.e("s_mul_i32 s21, s20, 14")
        k.e("s_sub_u32 s21, s2, s21")
    k.e("s_waitcnt lgkmcnt(0)")
    if xsrc[0] == "arg":
        k.srd(8, 6, 0, XBYTES)
    else:
        k.srd(8, 4, xsrc[1], XBYTES)
    k.srd(12, 4, 0, 0x1000000)
    k.srd(16, 4, Q_F if qkv else H_F, 0x600000 if qkv else 128 * 56 * 1024)
    k.e(f"s_mul_i32 s22, s20, {MT*16*896}")
    k.e(f"s_mul_i32 s23, s3, {DPW*16*896}")
    k.e("s_add_u32 s22, s22, s23")
    k.e(f"s_mul_i32 s24, s3, {DPW*1024}")
    k.e("s_lshl_b32 s25, s21, 2")
    k.e("s_add_u32 s25, s25, s3")
    k.e(f"s_mul_i32 s26, s25, {NTW*64}")
    k.e(f"s_add_u32 s26, s26, 0x{(CS_QKV if qkv else CS_GU):x}")
    k.e(f"s_mul_i32 s25, s25, {NTW*14336}")
    k.e(f"s_add_u32 s25, s25, 0x{(WQKV_F if qkv else WGU_F):x}")
    k.e("v_lshlrev_b32 v7, 4, v2")
    k.e("v_lshlrev_b32 v8, 2, v3")
    k.e(f"v_add_u32 v9, s24, v5")
    k.e(f"v_add_u32 v10, 0xe000, v9")
    for i in range(2 * DPW):
        k.e(f"v_mov_b32 v{ST+i}, 0")
    k.e("v_mov_b32 v11, 0x3f803f80")

    def variant(swapped):
        k.vm = 0
        for t in range(NTW):
            if swapped[t]:
                k.vmem(f"buffer_load_dwordx4 {vr(CS+4*t)}, v7, s[12:15], s26 offen offset:{64*t}")
            else:
                k.vmem(f"buffer_load_dword v{CS+4*t}, v8, s[12:15], s26 offen offset:{64*t}")
        mark = {}

        def issue(c):
            for i in range(DPW):
                k.e(f"s_add_u32 m0, s24, {(c*MT + i)*1024}")
                k.e(f"s_add_u32 s27, s22, {i*16*896 + c*64}")
                k.vmem("buffer_load_dwordx4 v4, s[8:11], s27 offen lds")
            for t in range(NTW):
                off = t * 14336 + c * 1024
                k.e(f"s_add_u32 s27, s25, {off & ~4095}")
                k.vmem(f"buffer_load_dwordx4 {ar((c*NTW+t)*4)}, v5, s[12:15], s27 offen offset:{off & 4095}")
            mark[c] = k.vm

        UP = 14 if qkv else 9
        for c in range(UP):
            issue(c)

        def lds_reads(c):
            b = c & 1
            for mt in range(MT):
                off = (c * MT + mt) * 1024
                if off >= 0xe000:
                    k.e(f"ds_read_b128 {vr(AF+(b*MT+mt)*4)}, v6 offset:{off-0xe000}")
                else:
                    k.e(f"ds_read_b128 {vr(AF+(b*MT+mt)*4)}, v5 offset:{off}")
            for i in range(DPW):
                off = (c * MT + i) * 1024
                if off >= 0xe000:
                    k.e(f"ds_read_b128 {vr(SF+(b*DPW+i)*4)}, v10 offset:{off-0xe000}")
                else:
                    k.e(f"ds_read_b128 {vr(SF+(b*DPW+i)*4)}, v9 offset:{off}")

        k.waitvm(mark[0])
        k.e("s_barrier")
        lds_reads(0)
        for c in range(14):
            b = c & 1
            if c + UP < 14:
                issue(c + UP)
            if c + 1 < 14:
                k.waitvm(mark[c + 1])
                k.e("s_barrier")
            k.e("s_waitcnt lgkmcnt(0)")
            if c + 1 < 14:
                lds_reads(c + 1)
            statops = []
            for i in range(DPW):
                for j in range(4):
                    r = SF + (b * DPW + i) * 4 + j
                    statops.append(f"v_dot2_f32_bf16 v{ST+2*i}, v{r}, v11, v{ST+2*i}")
                    statops.append(f"v_dot2_f32_bf16 v{ST+2*i+1}, v{r}, v{r}, v{ST+2*i+1}")
            n = 0
            for mt in range(MT):
                for t in range(NTW):
                    acc = ACC + (mt * NTW + t) * 4
                    a = vr(AF + (b * MT + mt) * 4)
                    bb = ar((c * NTW + t) * 4)
                    src = "0" if c == 0 else vr(acc)
                    if swapped[t]:
                        k.e(f"v_mfma_f32_16x16x32_bf16 {vr(acc)}, {bb}, {a}, {src}")
                    else:
                        k.e(f"v_mfma_f32_16x16x32_bf16 {vr(acc)}, {a}, {bb}, {src}")
                    n += 1
                    if statops and n >= 2:
                        k.e(statops.pop(0))
            for s in statops:
                k.e(s)
        k.e("s_nop 4")
        for i in range(DPW):
            s_, q_ = ST + 2 * i, ST + 2 * i + 1
            k.allreduce("v_add_f32", s_, TMP)
            k.allreduce("v_add_f32", q_, TMP)
            k.e(f"v_mul_f32 v{s_}, 0x{f32bits(1.0/448):x}, v{s_}")
            k.e(f"v_mul_f32 v{q_}, 0x{f32bits(1.0/448):x}, v{q_}")
            k.e(f"v_fma_f32 v{q_}, -v{s_}, v{s_}, v{q_}")
            k.e(f"v_max_f32 v{q_}, 0, v{q_}")
            k.rbf16(q_)
            k.e(f"v_add_f32 v{q_}, 0x{f32bits(1e-5):x}, v{q_}")
            k.rbf16(q_)
            k.e(f"v_sqrt_f32 v{q_}, v{q_}")
            k.e("s_nop 0")
            k.rbf16(q_)
            k.e(f"v_rcp_f32 v{q_}, v{q_}")
            k.rbf16(s_)
            k.e(f"s_mul_i32 s27, s3, {DPW*128}")
            k.e(f"s_add_u32 s27, s27, {STATS + i*128}")
            k.e(f"v_lshl_add_u32 v{TMP}, v3, 3, s27")
            k.e(f"ds_write_b64 v{TMP}, v[{s_}:{s_+1}]")
        k.e("s_waitcnt lgkmcnt(0)")
        k.e("s_barrier")
        k.e(f"v_lshlrev_b32 v{TMP}, 3, v3")
        k.e(f"v_add_u32 v{TMP}, {STATS}, v{TMP}")
        for mt in range(MT):
            k.e(f"ds_read_b64 v[{MR+2*mt}:{MR+2*mt+1}], v{TMP} offset:{mt*128}")
        if not all(swapped):
            k.e(f"v_lshlrev_b32 v{TMP+1}, 5, v2")
            k.e(f"v_add_u32 v{TMP+1}, {STATS}, v{TMP+1}")
            for mt in range(MT):
                k.e(f"ds_read_b128 {vr(MRV+8*mt)}, v{TMP+1} offset:{mt*128}")
                k.e(f"ds_read_b128 {vr(MRV+8*mt+4)}, v{TMP+1} offset:{mt*128+16}")
        k.e("s_waitcnt vmcnt(0) lgkmcnt(0)")
        if qkv:
            for t in range(NTW):
                k.e(f"s_mul_i32 s30, s3, 3")
                k.e(f"s_add_u32 s30, s30, {t}")
                if swapped[t]:
                    k.e("s_lshl_b32 s31, s21, 3")
                    k.e("s_add_u32 s31, s31, s30")
                    k.e("s_and_b32 s32, s31, 1")
                    k.e("s_lshr_b32 s31, s31, 1")
                    k.e("s_lshl_b32 s31, s31, 17")
                    k.e("s_lshl_b32 s33, s20, 12")
                    k.e("s_add_u32 s31, s31, s33")
                    k.e("s_lshl_b32 s32, s32, 9")
                    k.e("s_add_u32 s31, s31, s32")
                    k.e(f"v_lshrrev_b32 v{TMP}, 1, v2")
                    k.e(f"v_lshl_add_u32 v{TMP}, v{TMP}, 4, v3")
                    k.e(f"v_lshlrev_b32 v{TMP}, 4, v{TMP}")
                    k.e(f"v_and_b32 v{TMP+1}, 1, v2")
                    k.e(f"v_lshl_add_u32 v{TMP}, v{TMP+1}, 3, v{TMP}")
                    for mt in range(MT):
                        acc = ACC + (mt * NTW + t) * 4
                        o = TMP + 4 + (mt & 1) * 2
                        for p in range(2):
                            k.e(f"v_pk_fma_f32 v[{acc+2*p}:{acc+2*p+1}], v[{CS+4*t+2*p}:{CS+4*t+2*p+1}], v[{MR+2*mt}:{MR+2*mt+1}], v[{acc+2*p}:{acc+2*p+1}] op_sel:[0,0,0] op_sel_hi:[1,0,1] neg_lo:[0,1,0] neg_hi:[0,1,0]")
                            k.e(f"v_pk_mul_f32 v[{acc+2*p}:{acc+2*p+1}], v[{acc+2*p}:{acc+2*p+1}], v[{MR+2*mt}:{MR+2*mt+1}] op_sel:[0,1] op_sel_hi:[1,1]")
                            k.e(f"v_cvt_pk_bf16_f32 v{o+p}, v{acc+2*p}, v{acc+2*p+1}")
                        k.vmem(f"buffer_store_dwordx2 v[{o}:{o+1}], v{TMP}, s[16:19], s31 offen offset:{mt*1024}")
                else:
                    k.e("s_sub_u32 s30, s30, 8")
                    k.e("s_and_b32 s32, s30, 1")
                    k.e("s_lshr_b32 s31, s30, 1")
                    k.e("s_lshl_b32 s33, s21, 1")
                    k.e("s_add_u32 s31, s31, s33")
                    k.e("s_lshl_b32 s31, s31, 1")
                    k.e("s_add_u32 s31, s31, s32")
                    k.e("s_lshl_b32 s31, s31, 16")
                    k.e("s_lshl_b32 s33, s20, 11")
                    k.e("s_add_u32 s31, s31, s33")
                    k.e(f"s_add_u32 s31, s31, 0x{V_F-Q_F:x}")
                    k.e("s_cmp_eq_u32 s32, 1")
                    k.e("s_cselect_b32 s33, 0x3f803f80, 0")
                    k.e(f"v_cmp_eq_u32 vcc, 12, v3")
                    k.e(f"v_mov_b32 v{TMP+1}, s33")
                    k.e("s_nop 1")
                    k.e(f"v_cndmask_b32 v{TMP+1}, 0, v{TMP+1}, vcc")
                    for mp in range(MT // 2):
                        o = TMP + 4 + (mp & 1) * 4
                        for q in range(2):
                            mt = 2 * mp + q
                            acc = ACC + (mt * NTW + t) * 4
                            for r in range(4):
                                m_ = MRV + 8 * mt + 2 * r
                                k.e(f"v_fma_f32 v{acc+r}, -v{m_}, v{CS+4*t}, v{acc+r}")
                                k.e(f"v_mul_f32 v{acc+r}, v{acc+r}, v{m_+1}")
                            k.e(f"v_cvt_pk_bf16_f32 v{o+2*q}, v{acc}, v{acc+1}")
                            k.e(f"v_cvt_pk_bf16_f32 v{o+2*q+1}, v{acc+2}, v{acc+3}")
                        for j in range(4):
                            k.e(f"v_or_b32 v{o+j}, v{o+j}, v{TMP+1}")
                        k.vmem(f"buffer_store_dwordx4 {vr(o)}, v5, s[16:19], s31 offen offset:{mp*1024}")
        else:
            k.e(f"s_mul_i32 s31, s20, {8*56*1024}")
            k.e("s_lshl_b32 s32, s21, 2")
            k.e("s_add_u32 s32, s32, s3")
            k.e("s_lshl_b32 s32, s32, 10")
            k.e("s_add_u32 s31, s31, s32")
            for mt in range(MT):
                o = TMP + 4 + (mt & 1) * 4
                mr = MR + 2 * mt
                k.e(f"v_mul_f32 v{mr+1}, v{mr+1}, v{mr+1}")
                for t in range(2):
                    ag = ACC + (mt * NTW + t) * 4
                    au = ACC + (mt * NTW + 2 + t) * 4
                    for p in range(2):
                        for (a_, cs_) in ((ag, CS + 4 * t), (au, CS + 4 * (2 + t))):
                            k.e(f"v_pk_fma_f32 v[{a_+2*p}:{a_+2*p+1}], v[{cs_+2*p}:{cs_+2*p+1}], v[{mr}:{mr+1}], v[{a_+2*p}:{a_+2*p+1}] op_sel:[0,0,0] op_sel_hi:[1,0,1] neg_lo:[0,1,0] neg_hi:[0,1,0]")
                        k.e(f"v_pk_mul_f32 v[{ag+2*p}:{ag+2*p+1}], v[{ag+2*p}:{ag+2*p+1}], v[{au+2*p}:{au+2*p+1}]")
                        k.e(f"v_pk_mul_f32 v[{ag+2*p}:{ag+2*p+1}], v[{ag+2*p}:{ag+2*p+1}], v[{mr}:{mr+1}] op_sel:[0,1] op_sel_hi:[1,1]")
                        k.e(f"v_cvt_pk_bf16_f32 v{o+2*t+p}, v{ag+2*p}, v{ag+2*p+1}")
                k.e(f"s_add_u32 s32, s31, {mt*56*1024}")
                k.vmem(f"buffer_store_dwordx4 {vr(o)}, v5, s[16:19], s32 offen")
        k.e("s_endpgm")

    if qkv:
        k.e("s_cmp_eq_u32 s3, 2")
        k.e(f"s_cbranch_scc1 {name}_w2")
        k.e("s_cmp_eq_u32 s3, 3")
        k.e(f"s_cbranch_scc1 {name}_w3")
        variant([True, True, True])
        k.label(f"{name}_w2")
        variant([True, True, False])
        k.label(f"{name}_w3")
        variant([False, False, False])
    else:
        variant([True] * 4)
    k.label(f"{name}_done")
    k.e("s_endpgm")
    kernels.append((k, NV, NA, 48))
    return (name, NWG, 256, LDS)


def gen_attn():
    name = "attn_kernel"
    k = K(name)
    LDS = 48 * 1024
    S = 32
    KF = S + 72
    VF = KF + 24
    P = VF + 72
    OA = P + 36
    NV = OA + 8
    k.e("s_cmp_ge_u32 s2, 256")
    k.e(f"s_cbranch_scc1 {name}_done")
    k.e("s_load_dwordx2 s[4:5], s[0:1], 72")
    k.e("v_lshrrev_b32 v1, 6, v0")
    k.e("v_and_b32 v0, 63, v0")
    k.e("s_nop 0")
    k.e("v_readfirstlane_b32 s3, v1")
    k.e("v_lshrrev_b32 v2, 4, v0")
    k.e("v_and_b32 v3, 15, v0")
    k.e("v_lshlrev_b32 v5, 4, v0")
    k.e("s_and_b32 s20, s2, 15")
    k.e("s_lshr_b32 s21, s2, 4")
    k.e("s_waitcnt lgkmcnt(0)")
    k.e("s_lshl_b32 s22, s20, 17")
    k.e(f"s_add_u32 s23, s22, 0x{Q_F:x}")
    k.e("s_add_u32 s8, s4, s23")
    k.e("s_addc_u32 s9, s5, 0")
    k.e("s_mov_b32 s10, 0x20000")
    k.e("s_mov_b32 s11, 0x20000")
    k.e(f"s_add_u32 s23, s22, 0x{K_F:x}")
    k.e("s_add_u32 s12, s4, s23")
    k.e("s_addc_u32 s13, s5, 0")
    k.e("s_mov_b32 s14, 0x20000")
    k.e("s_mov_b32 s15, 0x20000")
    k.e(f"s_add_u32 s23, s22, 0x{V_F:x}")
    k.e("s_add_u32 s16, s4, s23")
    k.e("s_addc_u32 s17, s5, 0")
    k.e("s_mov_b32 s18, 0x10000")
    k.e("s_mov_b32 s19, 0x20000")
    k.e(f"s_add_u32 s23, s22, 0x{V_F+0x10000:x}")
    k.e("s_add_u32 s24, s4, s23")
    k.e("s_addc_u32 s25, s5, 0")
    k.e("s_mov_b32 s26, 0x10000")
    k.e("s_mov_b32 s27, 0x20000")
    k.srd(28, 4, O_F, 0x200000)
    k.e("s_lshl_b32 s32, s21, 3")
    k.e("s_add_u32 s32, s32, s3")
    k.e("s_lshl_b32 s33, s32, 10")
    k.vmem(f"buffer_load_dwordx4 v[8:11], v5, s[8:11], s33 offen")
    k.e("s_lshl_b32 s34, s21, 3")
    k.e("s_sub_u32 s34, s34, 16")
    k.e("s_mul_i32 s35, s3, 3")
    k.e("s_add_u32 s34, s34, s35")
    k.e("s_lshl_b32 s34, s34, 10")
    k.e("v_add_u32 v6, s34, v5")
    k.e("s_lshl_b32 s35, s35, 10")
    for i in range(3):
        k.e(f"s_add_u32 m0, s35, {i*1024}")
        k.e("s_nop 0")
        k.vmem("buffer_load_dwordx4 v6, s[12:15], 0 offen lds")
        if i < 2:
            k.e("v_add_u32 v6, 1024, v6")
    k.e("s_and_b32 s36, s3, 3")
    k.e("s_mul_i32 s36, s36, 3")
    k.e("s_lshl_b32 s34, s21, 2")
    k.e("s_sub_u32 s34, s34, 8")
    k.e("s_add_u32 s34, s34, s36")
    k.e("s_lshl_b32 s34, s34, 10")
    k.e("v_add_u32 v6, s34, v5")
    k.e(f"s_add_u32 s35, s35, {24*1024}")
    l1 = k.newlab()
    l2 = k.newlab()
    k.e("s_cmp_ge_u32 s3, 4")
    k.e(f"s_cbranch_scc1 {l1}")
    vm0 = k.vm
    for i in range(3):
        k.e(f"s_add_u32 m0, s35, {i*1024}")
        k.e("s_nop 0")
        k.vmem("buffer_load_dwordx4 v6, s[16:19], 0 offen lds")
        if i < 2:
            k.e("v_add_u32 v6, 1024, v6")
    k.e(f"s_branch {l2}")
    k.label(l1)
    k.vm = vm0
    for i in range(3):
        k.e(f"s_add_u32 m0, s35, {i*1024}")
        k.e("s_nop 0")
        k.vmem("buffer_load_dwordx4 v6, s[24:27], 0 offen lds")
        if i < 2:
            k.e("v_add_u32 v6, 1024, v6")
    k.label(l2)
    k.e("v_cmp_eq_u32 vcc, 3, v2")
    k.e("v_mov_b32 v12, 0x3f80")
    k.e("v_mov_b32 v13, 0xff7f")
    k.e("s_nop 0")
    k.e("v_cndmask_b32 v12, 0, v12, vcc")
    k.e("v_cndmask_b32 v13, 0, v13, vcc")
    k.e("s_and_b32 s36, s3, 1")
    k.e("s_lshl_b32 s37, s36, 4")
    k.e("s_add_u32 s37, s37, 256")
    k.e("v_lshlrev_b32 v14, 2, v2")
    k.e("v_sub_u32 v14, v3, v14")
    k.e("v_add_u32 v14, s37, v14")
    k.e("s_and_b32 s38, s3, 6")
    k.e("s_lshl_b32 s39, s38, 10")
    k.e("v_add_u32 v15, s39, v5")
    k.e("s_lshl_b32 s39, s38, 9")
    k.e(f"s_add_u32 s39, s39, {24*1024}")
    k.e("v_add_u32 v16, s39, v5")
    k.e("s_waitcnt vmcnt(0)")
    k.e("v_or_b32 v10, v10, v12")
    k.e("s_barrier")
    l3 = k.newlab()
    k.e("s_cmp_ge_u32 s21, 2")
    k.e(f"s_cbranch_scc1 {l3}")
    k.e("s_lshl_b32 s40, s21, 3")
    k.e("s_sub_u32 s40, 16, s40")
    k.e("s_lshl_b32 s41, s3, 1")
    l4 = k.newlab()
    k.e("s_cmp_ge_u32 s41, s40")
    k.e(f"s_cbranch_scc1 {l4}")
    k.e("v_mov_b32 v20, 0")
    k.e("v_mov_b32 v21, 0")
    k.e("v_mov_b32 v22, v13")
    k.e("v_mov_b32 v23, 0")
    k.e("s_lshl_b32 s41, s41, 10")
    k.e("v_add_u32 v17, s41, v5")
    k.e("ds_write_b128 v17, v[20:23]")
    k.e("ds_write_b128 v17, v[20:23] offset:1024")
    k.e("s_waitcnt lgkmcnt(0)")
    k.label(l4)
    k.e("s_barrier")
    k.label(l3)
    for j in range(6):
        k.e(f"ds_read_b128 {vr(KF+4*j)}, v15 offset:{j*1024}")
    for j in range(18):
        k.e(f"s_waitcnt lgkmcnt({min(5, 17-j)})")
        k.e(f"v_mfma_f32_16x16x32_bf16 {vr(S+4*j)}, {vr(KF+4*(j%6))}, v[8:11], 0")
        if j + 6 < 18:
            k.e(f"ds_read_b128 {vr(KF+4*(j%6))}, v15 offset:{(j+6)*1024}")
    for t in range(9):
        k.e(f"ds_read_b128 {vr(VF+8*t)}, v16 offset:{t*1024}")
        k.e(f"ds_read_b128 {vr(VF+8*t+4)}, v16 offset:{t*1024+12*1024}")
    k.e("v_mov_b32 v17, 0xff7fffff")
    k.e("s_nop 4")
    for j in (0, 1, 16, 17):
        for r in range(4):
            k.e(f"v_subrev_u32 v18, {16*j + r}, v14")
            k.e("v_cmp_gt_u32 vcc, 0x100, v18")
            k.e("s_nop 1")
            k.e(f"v_cndmask_b32 v{S+4*j+r}, v17, v{S+4*j+r}, vcc")
    k.e(f"v_max3_f32 v18, v{S}, v{S+1}, v{S+2}")
    i = 3
    while i < 72:
        if i + 1 < 72:
            k.e(f"v_max3_f32 v18, v18, v{S+i}, v{S+i+1}")
            i += 2
        else:
            k.e(f"v_max_f32 v18, v18, v{S+i}")
            i += 1
    k.allreduce("v_max_f32", 18, 19)
    cc = (28 ** -0.5) * math.log2(math.e)
    k.e(f"s_mov_b32 s40, 0x{f32bits(cc):x}")
    k.e("v_mul_f32 v18, s40, v18")
    for i in range(72):
        k.e(f"v_fma_f32 v{S+i}, v{S+i}, s40, -v18")
    for i in range(72):
        k.e(f"v_exp_f32 v{S+i}, v{S+i}")
    k.e("s_nop 0")
    for i in range(36):
        k.e(f"v_cvt_pk_bf16_f32 v{P+i}, v{S+2*i}, v{S+2*i+1}")
    k.e("s_waitcnt lgkmcnt(0)")
    k.e("s_nop 1")
    for t in range(9):
        for hf in range(2):
            src = "0" if t == 0 else vr(OA + 4 * hf)
            k.e(f"v_mfma_f32_16x16x32_bf16 {vr(OA+4*hf)}, {vr(VF+8*t+4*hf)}, {vr(P+4*t)}, {src}")
    k.e("v_add_u32 v18, 48, v3")
    k.e("v_lshlrev_b32 v18, 2, v18")
    k.e("s_nop 7")
    k.e(f"ds_bpermute_b32 v19, v18, v{OA+4}")
    k.e("s_waitcnt lgkmcnt(0)")
    k.e("v_rcp_f32 v19, v19")
    k.e("s_nop 0")
    for i in range(8):
        k.e(f"v_mul_f32 v{OA+i}, v{OA+i}, v19")
    for i in range(4):
        k.e(f"v_cvt_pk_bf16_f32 v{20+i}, v{OA+2*i}, v{OA+2*i+1}")
    k.e("s_lshl_b32 s33, s32, 4")
    k.e("s_add_u32 s33, s33, s20")
    k.e("s_lshl_b32 s33, s33, 10")
    k.vmem("buffer_store_dwordx4 v[20:23], v5, s[28:31], s33 offen")
    k.label(f"{name}_done")
    k.e("s_endpgm")
    kernels.append((k, NV, 0, 48))
    return (name, 256, 512, LDS)


def gen_skgemm(name, a_off, b_off, ksteps, res, dst):
    k = K(name)
    KS = ksteps // 8
    DEPTH = min(KS, 5)
    LDS = 128 * 1024
    FR = 16
    ACC = FR + DEPTH * 32
    NV = ACC + 64
    assert NV <= 256
    k.e("s_cmp_ge_u32 s2, 224")
    k.e(f"s_cbranch_scc1 {name}_done")
    k.e("s_load_dwordx2 s[4:5], s[0:1], 72")
    if res[0] == "arg":
        k.e(f"s_load_dwordx2 s[6:7], s[0:1], {res[1]}")
    if dst[0] == "arg":
        k.e(f"s_load_dwordx2 s[40:41], s[0:1], {dst[1]}")
    k.e("v_lshrrev_b32 v1, 6, v0")
    k.e("v_and_b32 v0, 63, v0")
    k.e("s_nop 0")
    k.e("v_readfirstlane_b32 s3, v1")
    k.e("v_lshrrev_b32 v2, 4, v0")
    k.e("v_and_b32 v3, 15, v0")
    k.e("v_lshlrev_b32 v5, 4, v0")
    k.e("s_mul_i32 s20, s2, 9363")
    k.e("s_lshr_b32 s20, s20, 16")
    k.e("s_mul_i32 s21, s20, 7")
    k.e("s_sub_u32 s21, s2, s21")
    k.e("s_waitcnt lgkmcnt(0)")
    k.srd(8, 4, a_off, 128 * ksteps * 1024)
    k.srd(12, 4, b_off, 28 * ksteps * 1024)
    if res[0] == "arg":
        k.srd(16, 6, 0, XBYTES)
    else:
        k.srd(16, 4, res[1], XBYTES)
    if dst[0] == "arg":
        k.srd(24, 40, 0, XBYTES)
    else:
        k.srd(24, 4, dst[1], XBYTES)
    k.e(f"s_mul_i32 s22, s3, {KS*1024}")
    k.e(f"s_mul_i32 s28, s20, {4*ksteps*1024}")
    k.e("s_add_u32 s28, s28, s22")
    k.e(f"s_mul_i32 s29, s21, {4*ksteps*1024}")
    k.e("s_add_u32 s29, s29, s22")
    mark = {}

    def issue(c):
        sl = FR + (c % DEPTH) * 32
        for i in range(4):
            off = i * ksteps * 1024 + c * 1024
            k.e(f"s_add_u32 s30, s28, {off & ~4095}")
            k.vmem(f"buffer_load_dwordx4 {vr(sl+4*i)}, v5, s[8:11], s30 offen offset:{off & 4095}")
        for i in range(4):
            off = i * ksteps * 1024 + c * 1024
            k.e(f"s_add_u32 s30, s29, {off & ~4095}")
            k.vmem(f"buffer_load_dwordx4 {vr(sl+16+4*i)}, v5, s[12:15], s30 offen offset:{off & 4095}")
        mark[c] = k.vm

    for c in range(DEPTH):
        issue(c)
    for c in range(KS):
        sl = FR + (c % DEPTH) * 32
        k.waitvm(mark[c])
        for j in range(4):
            for i in range(4):
                acc = ACC + (j * 4 + i) * 4
                src = "0" if c == 0 else vr(acc)
                k.e(f"v_mfma_f32_16x16x32_bf16 {vr(acc)}, {vr(sl+16+4*j)}, {vr(sl+4*i)}, {src}")
        if c + DEPTH < KS:
            issue(c + DEPTH)
    k.e("s_lshr_b32 s31, s3, 1")
    k.e("s_and_b32 s32, s3, 1")
    k.e("s_lshl_b32 s32, s32, 1")
    k.e("s_lshl_b32 s33, s20, 6")
    k.e("s_lshl_b32 s34, s32, 4")
    k.e("s_add_u32 s33, s33, s34")
    k.e("s_mul_i32 s33, s33, 896")
    k.e("s_lshl_b32 s34, s21, 7")
    k.e("s_lshl_b32 s35, s31, 5")
    k.e("s_add_u32 s34, s34, s35")
    k.e("s_add_u32 s33, s33, s34")
    k.e("v_mul_u32_u24 v6, 896, v3")
    k.e("v_lshl_add_u32 v6, v2, 3, v6")
    k.e(f"s_add_u32 s34, s33, {16*896}")
    k.vmem("buffer_load_dwordx2 v[8:9], v6, s[16:19], s33 offen")
    k.vmem("buffer_load_dwordx2 v[10:11], v6, s[16:19], s34 offen")
    k.e("s_lshl_b32 s30, s3, 14")
    k.e("v_add_u32 v7, s30, v5")
    k.e("s_nop 7")
    for t in range(16):
        k.e(f"ds_write_b128 v7, {vr(ACC+4*t)} offset:{t*1024}")
    k.e("s_waitcnt lgkmcnt(0)")
    k.e("s_barrier")
    k.e("s_lshl_b32 s30, s3, 11")
    k.e("v_add_u32 v7, s30, v5")
    k.e("v_add_u32 v12, 0x10000, v7")
    for q in range(2):
        for w in range(8):
            va = 7 if w < 4 else 12
            k.e(f"ds_read_b128 {vr(FR+(q*8+w)*4)}, v{va} offset:{(w%4)*16384 + q*1024}")
    for q in range(2):
        b = FR + q * 32
        k.e(f"s_waitcnt lgkmcnt({8 if q == 0 else 0})")
        for w in (1, 2, 3, 4, 5, 6, 7):
            for p in range(2):
                k.e(f"v_pk_add_f32 v[{b+2*p}:{b+2*p+1}], v[{b+2*p}:{b+2*p+1}], v[{b+4*w+2*p}:{b+4*w+2*p+1}]")
    k.e("s_waitcnt vmcnt(0)")
    for q in range(2):
        b = FR + q * 32
        rs = 8 + 2 * q
        for p in range(2):
            k.e(f"v_cvt_pk_bf16_f32 v{b+8+p}, v{b+2*p}, v{b+2*p+1}")
        for p in range(2):
            k.e(f"v_lshlrev_b32 v{b+2*p}, 16, v{b+8+p}")
            k.e(f"v_and_b32 v{b+2*p+1}, 0xffff0000, v{b+8+p}")
            k.e(f"v_lshlrev_b32 v{b+12+2*p}, 16, v{rs+p}")
            k.e(f"v_and_b32 v{b+12+2*p+1}, 0xffff0000, v{rs+p}")
            k.e(f"v_pk_add_f32 v[{b+2*p}:{b+2*p+1}], v[{b+2*p}:{b+2*p+1}], v[{b+12+2*p}:{b+12+2*p+1}]")
            k.e(f"v_cvt_pk_bf16_f32 v{b+8+p}, v{b+2*p}, v{b+2*p+1}")
        k.vmem(f"buffer_store_dwordx2 v[{b+8}:{b+9}], v6, s[24:27], s{33+q} offen")
    k.label(f"{name}_done")
    k.e("s_endpgm")
    kernels.append((k, NV, 0, 48))
    return (name, 224, 512, LDS)


launches = []
launches.append(gen_prep())
k1a = gen_lngemm("qkv0_kernel", "qkv", ("arg", KA_X))
att = gen_attn()
k3a = gen_skgemm("wo0_kernel", O_F, WO_F, 16, ("arg", KA_X), ("ws", X1))
k4 = gen_lngemm("gu_kernel", "gu", ("ws", X1))
k5a = gen_skgemm("dn0_kernel", H_F, WD_F, 56, ("ws", X1), ("ws", X2))
k1b = gen_lngemm("qkv1_kernel", "qkv", ("ws", X2))
k3b = gen_skgemm("wo1_kernel", O_F, WO_F, 16, ("ws", X2), ("ws", X1))
k5b = gen_skgemm("dn1_kernel", H_F, WD_F, 56, ("ws", X1), ("arg", KA_OUT))
launches += [k1a, att, k3a, k4, k5a, k1b, att, k3b, k4, k5b]

out = []
for (n, g, b, l) in launches:
    out.append(f"; @launch kernel={n} grid=({g},1,1) block=({b},1,1) lds={l}")
out.append('.amdgcn_target "amdgcn-amd-amdhsa--gfx950"')
out.append(".text")
for (k, nv, na, ns) in kernels:
    out.append(f".globl {k.name}")
    out.append(".p2align 8")
    out.append(f".type {k.name},@function")
    out.append(f"{k.name}:")
    out += k.lines
out.append('.section .rodata,"a"')
for (k, nv, na, ns) in kernels:
    ao = (nv + 3) & ~3
    out.append(".p2align 6")
    out.append(f".amdhsa_kernel {k.name}")
    out.append(f"  .amdhsa_next_free_vgpr {ao + na if na else nv}")
    out.append(f"  .amdhsa_next_free_sgpr {ns}")
    out.append(f"  .amdhsa_accum_offset {ao}")
    out.append("  .amdhsa_group_segment_fixed_size 0")
    out.append("  .amdhsa_kernarg_size 80")
    out.append("  .amdhsa_user_sgpr_count 2")
    out.append("  .amdhsa_user_sgpr_kernarg_segment_ptr 1")
    out.append("  .amdhsa_system_sgpr_workgroup_id_x 1")
    out.append(".end_amdhsa_kernel")
open(OUT, "w").write("\n".join(out) + "\n")
print("wrote", OUT, sum(len(k.lines) for k, *_ in kernels), "lines")
```
